```python
import torch

def _softmax(x, axis=-1):
    return torch.softmax(x, dim=axis)
def _gelu(x):
    return torch.nn.functional.gelu(x, approximate="tanh")
def _silu(x):
    return torch.nn.functional.silu(x)
def _sigmoid(x):
    return torch.sigmoid(x)
def _layernorm(x, axis=-1, eps=1e-5):
    m = x.mean(dim=axis, keepdim=True)
    v = x.var(dim=axis, keepdim=True, unbiased=False)
    return (x - m) / torch.sqrt(v + eps)
def _scatter_add(tgt, idx, src, axis=0):
    return tgt.clone().index_add_(axis, idx, src)
def _segment_sum(src, seg, n):
    out = torch.zeros((n,) + src.shape[1:], dtype=src.dtype)
    return out.index_add_(0, seg, src)
def _pad(x, pw):
    flat = tuple(v for pair in reversed(pw) for v in pair)
    return torch.nn.functional.pad(x, flat)

kernel_name = 'standalone__rezero__sampling'

def setup_inputs():

    _w = (lambda a: (lambda t: t.to(torch.bfloat16) if t.is_floating_point() else t)(torch.as_tensor(a)))
    B, S, D = 1024, 8, 640
    return {
        "x": _w((lambda *s: torch.randn(*s, dtype=torch.bfloat16) * 0.05)(B, S, D)),
        "fx": _w((lambda *s: torch.randn(*s, dtype=torch.bfloat16) * 0.8)(B, S, D)),
        "alpha": _w((lambda *s: torch.randn(*s, dtype=torch.bfloat16) * 0.8)(1) * 0.1),
    }

def reference(x, fx, alpha):
    return x + alpha * fx
```

```python
import sys

NBYTES = 1024 * 8 * 640 * 2

HEADER = """; Kernarg layout for this problem (48 bytes, ptrs only, base s[0:1]):
"""

def gen(block=256, U=1, ld="", st="", layout="wg", lds=0, fused=False):
    wg_bytes = block * 16 * U
    assert NBYTES % wg_bytes == 0
    grid = NBYTES // wg_bytes
    o = []
    a = o.append
    a(HEADER.rstrip("\n"))
    a(f"; @launch grid=({grid},1,1) block=({block},1,1) lds={lds}")
    a('.amdgcn_target "amdgcn-amd-amdhsa--gfx950"')
    a(".text")
    a(".globl standalone__rezero__sampling_kernel")
    a(".p2align 8")
    a(".type standalone__rezero__sampling_kernel,@function")
    a("standalone__rezero__sampling_kernel:")
    a("    s_load_dwordx8 s[4:11], s[0:1], 0")
    a(f"    s_cmp_ge_u32 s2, {grid}")
    a("    s_cbranch_scc1 L_end")
    if layout == "wg":
        a(f"    s_mul_i32 s3, s2, {wg_bytes}")
        step = block * 16
    else:
        a(f"    s_mul_i32 s3, s2, {block*16}")
        step = NBYTES // U
    a("    v_lshl_add_u32 v0, v0, 4, s3")
    offs = []
    nv = 1
    for u in range(U):
        off = u * step
        if u == 0:
            offs.append(("v0", 0))
        elif off < 4096:
            offs.append(("v0", off))
        else:
            a(f"    v_add_u32 v{nv}, {off}, v0")
            offs.append((f"v{nv}", 0))
            nv += 1
    base = (nv + 3) // 4 * 4
    X = [base + 8 * u for u in range(U)]
    F = [base + 8 * u + 4 for u in range(U)]
    T = base + 8 * U
    a("    s_mov_b32 s14, 0xffff0000")
    a("    s_waitcnt lgkmcnt(0)")
    a("    s_load_dword s12, s[8:9], 0")
    for u in range(U):
        v, off = offs[u]
        os_ = f" offset:{off}" if off else ""
        a(f"    global_load_dwordx4 v[{F[u]}:{F[u]+3}], {v}, s[6:7]{os_} {ld}".rstrip())
        a(f"    global_load_dwordx4 v[{X[u]}:{X[u]+3}], {v}, s[4:5]{os_} {ld}".rstrip())
    a("    s_waitcnt lgkmcnt(0)")
    a("    s_lshl_b32 s12, s12, 16")
    a("    s_mov_b32 s13, s12")
    for u in range(U):
        n = 2 * (U - u - 1) + u
        if not fused:
            a(f"    s_waitcnt vmcnt({min(n+1,63)})")
            for d in range(4):
                f = F[u] + d
                t = T + 2 * (d % 2)
                a(f"    v_lshlrev_b32 v{t}, 16, v{f}")
                a(f"    v_and_b32 v{t+1}, s14, v{f}")
                a(f"    v_pk_mul_f32 v[{t}:{t+1}], v[{t}:{t+1}], s[12:13]")
                a(f"    v_cvt_pk_bf16_f32 v{f}, v{t}, v{t+1}")
            a(f"    s_waitcnt vmcnt({min(n,63)})")
            for d in range(4):
                f = F[u] + d
                x = X[u] + d
                a(f"    v_lshlrev_b32 v{T}, 16, v{f}")
                a(f"    v_and_b32 v{T+1}, s14, v{f}")
                a(f"    v_lshlrev_b32 v{T+2}, 16, v{x}")
                a(f"    v_and_b32 v{T+3}, s14, v{x}")
                a(f"    v_pk_add_f32 v[{T}:{T+1}], v[{T}:{T+1}], v[{T+2}:{T+3}]")
                a(f"    v_cvt_pk_bf16_f32 v{x}, v{T}, v{T+1}")
        else:
            a(f"    s_waitcnt vmcnt({min(n,63)})")
            for d in range(4):
                f = F[u] + d
                x = X[u] + d
                a(f"    v_lshlrev_b32 v{T}, 16, v{f}")
                a(f"    v_and_b32 v{T+1}, s14, v{f}")
                a(f"    v_lshlrev_b32 v{T+2}, 16, v{x}")
                a(f"    v_and_b32 v{T+3}, s14, v{x}")
                a(f"    v_pk_fma_f32 v[{T}:{T+1}], v[{T}:{T+1}], s[12:13], v[{T+2}:{T+3}]")
                a(f"    v_cvt_pk_bf16_f32 v{x}, v{T}, v{T+1}")
        v, off = offs[u]
        os_ = f" offset:{off}" if off else ""
        a(f"    global_store_dwordx4 {v}, v[{X[u]}:{X[u]+3}], s[10:11]{os_} {st}".rstrip())
    a("L_end:")
    a("    s_endpgm")
    nvgpr = T + 4
    a('.section .rodata,"a"')
    a(".p2align 6")
    a(".amdhsa_kernel standalone__rezero__sampling_kernel")
    a(f"  .amdhsa_next_free_vgpr {nvgpr}")
    a("  .amdhsa_next_free_sgpr 16")
    a(f"  .amdhsa_accum_offset {(nvgpr+3)//4*4}")
    a("  .amdhsa_group_segment_fixed_size 0")
    a("  .amdhsa_kernarg_size 48")
    a("  .amdhsa_user_sgpr_count 2")
    a("  .amdhsa_user_sgpr_kernarg_segment_ptr 1")
    a("  .amdhsa_system_sgpr_workgroup_id_x 1")
    a("  .amdhsa_float_denorm_mode_32 3")
    a(".end_amdhsa_kernel")
    return "\n".join(o) + "\n"

if __name__ == "__main__":
    import argparse
    p = argparse.ArgumentParser()
    p.add_argument("--block", type=int, default=256)
    p.add_argument("--U", type=int, default=1)
    p.add_argument("--ld", default="")
    p.add_argument("--st", default="")
    p.add_argument("--layout", default="wg")
    p.add_argument("--lds", type=int, default=0)
    p.add_argument("--fused", action="store_true")
    p.add_argument("-o", default="-")
    a = p.parse_args()
    s = gen(a.block, a.U, a.ld, a.st, a.layout, a.lds, a.fused)
    if a.o == "-":
        sys.stdout.write(s)
    else:
        open(a.o, "w").write(s)
```

```python
import sys
from gen import HEADER, NBYTES

def body(block, U, ld, st):
    wg_bytes = block * 16 * U
    grid = NBYTES // wg_bytes
    wpb = block // 64
    o = []
    a = o.append
    a("main_kernel:")
    a("    s_memrealtime s[16:17]")
    a("    s_load_dwordx8 s[4:11], s[0:1], 0")
    a("    s_load_dwordx2 s[24:25], s[0:1], 40")
    a(f"    s_cmp_ge_u32 s2, {grid}")
    a("    s_cbranch_scc1 L_end")
    a(f"    s_mul_i32 s3, s2, {wg_bytes}")
    step = block * 16
    a("    v_lshrrev_b32 v3, 6, v0")
    a("    v_lshl_add_u32 v0, v0, 4, s3")
    offs = []
    nv = 4
    for u in range(U):
        off = u * step
        if u == 0: offs.append(("v0", 0))
        elif off < 4096: offs.append(("v0", off))
        else:
            a(f"    v_add_u32 v{nv}, {off}, v0")
            offs.append((f"v{nv}", 0)); nv += 1
    base = (nv + 3) // 4 * 4
    X = [base + 8 * u for u in range(U)]
    F = [base + 8 * u + 4 for u in range(U)]
    T = base + 8 * U
    a("    s_mov_b32 s14, 0xffff0000")
    a("    s_waitcnt lgkmcnt(0)")
    a("    s_memrealtime s[18:19]")
    a("    s_load_dword s12, s[8:9], 0")
    for u in range(U):
        v, off = offs[u]
        os_ = f" offset:{off}" if off else ""
        a(f"    global_load_dwordx4 v[{F[u]}:{F[u]+3}], {v}, s[6:7]{os_} {ld}".rstrip())
        a(f"    global_load_dwordx4 v[{X[u]}:{X[u]+3}], {v}, s[4:5]{os_} {ld}".rstrip())
    a("    s_waitcnt lgkmcnt(0)")
    a("    s_lshl_b32 s12, s12, 16")
    a("    s_mov_b32 s13, s12")
    for u in range(U):
        n = 2 * (U - u - 1) + u
        a(f"    s_waitcnt vmcnt({min(n+1,63)})")
        if u == 0:
            a("    s_memrealtime s[20:21]")
        for d in range(4):
            f = F[u] + d
            t = T + 2 * (d % 2)
            a(f"    v_lshlrev_b32 v{t}, 16, v{f}")
            a(f"    v_and_b32 v{t+1}, s14, v{f}")
            a(f"    v_pk_mul_f32 v[{t}:{t+1}], v[{t}:{t+1}], s[12:13]")
            a(f"    v_cvt_pk_bf16_f32 v{f}, v{t}, v{t+1}")
        a(f"    s_waitcnt vmcnt({min(n,63)})")
        for d in range(4):
            f = F[u] + d
            x = X[u] + d
            a(f"    v_lshlrev_b32 v{T}, 16, v{f}")
            a(f"    v_and_b32 v{T+1}, s14, v{f}")
            a(f"    v_lshlrev_b32 v{T+2}, 16, v{x}")
            a(f"    v_and_b32 v{T+3}, s14, v{x}")
            a(f"    v_pk_add_f32 v[{T}:{T+1}], v[{T}:{T+1}], v[{T+2}:{T+3}]")
            a(f"    v_cvt_pk_bf16_f32 v{x}, v{T}, v{T+1}")
        v, off = offs[u]
        os_ = f" offset:{off}" if off else ""
        a(f"    global_store_dwordx4 {v}, v[{X[u]}:{X[u]+3}], s[10:11]{os_} {st}".rstrip())
    a("    s_waitcnt vmcnt(0)")
    a("    s_memrealtime s[22:23]")
    a(f"    s_mul_i32 s3, s2, {wpb*16}")
    a("    v_lshl_add_u32 v3, v3, 4, s3")
    a("    s_waitcnt lgkmcnt(0)")
    a(f"    v_mov_b32 v{T}, s16")
    a(f"    v_mov_b32 v{T+1}, s18")
    a(f"    v_mov_b32 v{T+2}, s20")
    a(f"    v_mov_b32 v{T+3}, s22")
    a("    s_mov_b64 exec, 1")
    a(f"    global_store_dwordx4 v3, v[{T}:{T+3}], s[24:25]")
    a("L_end:")
    a("    s_endpgm")
    return o, grid, T + 4, grid * wpb

def gen(block=256, U=2, ld="", st="", q=0, k=0):
    b, grid, nvgpr, nwaves = body(block, U, ld, st)
    o = []
    a = o.append
    a(HEADER.rstrip("\n"))
    a(f"; @launch kernel=main_kernel grid=({grid},1,1) block=({block},1,1) lds=0")
    a(f"; @launch kernel=red_kernel grid=(1,1,1) block=(64,1,1) lds=0")
    a('.amdgcn_target "amdgcn-amd-amdhsa--gfx950"')
    a(".text")
    a(".globl main_kernel")
    a(".p2align 8")
    a(".type main_kernel,@function")
    o += b
    a(".globl red_kernel")
    a(".p2align 8")
    a(".type red_kernel,@function")
    a("red_kernel:")
    a("    s_memrealtime s[16:17]")
    a("    s_load_dwordx4 s[4:7], s[0:1], 32")
    a("    s_cmp_ge_u32 s2, 1")
    a("    s_cbranch_scc1 R_end")
    a("    v_lshlrev_b32 v1, 4, v0")
    a("    v_mov_b32 v8, 0")
    a("    v_mov_b32 v9, -1")
    a("    v_mov_b32 v10, -1")
    a("    v_mov_b32 v11, 0")
    a("    v_mov_b32 v12, 0")
    a("    v_mov_b32 v13, -1")
    a("    v_mov_b32 v14, 0")
    a("    v_mov_b32 v15, 0")
    a(f"    s_mov_b32 s8, {nwaves//64}")
    a("    s_waitcnt lgkmcnt(0)")
    a("R_loop:")
    a("    global_load_dwordx4 v[4:7], v1, s[6:7]")
    a("    v_add_u32 v1, 1024, v1")
    a("    s_waitcnt vmcnt(0)")
    a("    v_sub_u32 v2, v5, v4")
    a("    v_max_u32 v15, v15, v2")
    a("    v_sub_u32 v4, s16, v4")
    a("    v_sub_u32 v5, s16, v5")
    a("    v_sub_u32 v6, s16, v6")
    a("    v_sub_u32 v7, s16, v7")
    a("    v_max_u32 v8, v8, v4")
    a("    v_min_u32 v9, v9, v4")
    a("    v_min_u32 v10, v10, v7")
    a("    v_max_u32 v11, v11, v6")
    a("    v_max_u32 v12, v12, v5")
    a("    v_min_u32 v13, v13, v6")
    a("    v_max_u32 v14, v14, v7")
    a("    s_sub_u32 s8, s8, 1")
    a("    s_cmp_lg_u32 s8, 0")
    a("    s_cbranch_scc1 R_loop")
    a("    s_mov_b32 s20, 0")
    a("    s_mov_b32 s21, -1")
    a("    s_mov_b32 s22, -1")
    a("    s_mov_b32 s23, 0")
    a("    s_mov_b32 s24, 0")
    a("    s_mov_b32 s25, -1")
    a("    s_mov_b32 s26, 0")
    a("    s_mov_b32 s27, 0")
    a("    s_mov_b32 s8, 0")
    a("R_l2:")
    ops = ["max", "min", "min", "max", "max", "min", "max", "max"]
    for i, op in enumerate(ops):
        a(f"    v_readlane_b32 s9, v{8+i}, s8")
        a(f"    s_{op}_u32 s{20+i}, s{20+i}, s9")
    a("    s_add_u32 s8, s8, 1")
    a("    s_cmp_lt_u32 s8, 64")
    a("    s_cbranch_scc1 R_l2")
    a("    s_sub_u32 s30, s20, s22")
    a("    s_mov_b32 s31, s22")
    a("    s_sub_u32 s32, s20, s24")
    a("    s_sub_u32 s33, s20, s21")
    a("    s_sub_u32 s34, s20, s23")
    a("    s_sub_u32 s35, s20, s25")
    a("    s_sub_u32 s36, s20, s26")
    a("    s_mov_b32 s37, s27")
    for i in range(8):
        a(f"    v_mov_b32 v{16+i}, s{30+i}")
    a("    v_mov_b32 v1, 0")
    a("    s_mov_b64 exec, 1")
    a("    global_store_dwordx4 v1, v[16:19], s[4:5]")
    a("    global_store_dwordx4 v1, v[20:23], s[4:5] offset:16")
    if k and q:
        a(f"    s_min_u32 s40, s{29+q}, 5000")
        a(f"    s_mul_i32 s40, s40, {k}")
        a("    s_memrealtime s[42:43]")
        a("    s_waitcnt lgkmcnt(0)")
        a("R_spin:")
        a("    s_memrealtime s[44:45]")
        a("    s_waitcnt lgkmcnt(0)")
        a("    s_sub_u32 s46, s44, s42")
        a("    s_cmp_lt_u32 s46, s40")
        a("    s_cbranch_scc1 R_spin")
    a("R_end:")
    a("    s_endpgm")
    a('.section .rodata,"a"')
    for name, nv, ns in (("main_kernel", nvgpr, 32), ("red_kernel", 32, 64)):
        a(".p2align 6")
        a(f".amdhsa_kernel {name}")
        a(f"  .amdhsa_next_free_vgpr {nv}")
        a(f"  .amdhsa_next_free_sgpr {ns}")
        a(f"  .amdhsa_accum_offset {(nv+3)//4*4}")
        a("  .amdhsa_group_segment_fixed_size 0")
        a("  .amdhsa_kernarg_size 48")
        a("  .amdhsa_user_sgpr_count 2")
        a("  .amdhsa_user_sgpr_kernarg_segment_ptr 1")
        a("  .amdhsa_system_sgpr_workgroup_id_x 1")
        a("  .amdhsa_float_denorm_mode_32 3")
        a(".end_amdhsa_kernel")
    return "\n".join(o) + "\n"

if __name__ == "__main__":
    import argparse
    p = argparse.ArgumentParser()
    p.add_argument("--block", type=int, default=256)
    p.add_argument("--U", type=int, default=2)
    p.add_argument("--ld", default="")
    p.add_argument("--st", default="")
    p.add_argument("--q", type=int, default=0)
    p.add_argument("--k", type=int, default=0)
    p.add_argument("-o", default="-")
    a = p.parse_args()
    s = gen(a.block, a.U, a.ld, a.st, a.q, a.k)
    if a.o == "-": sys.stdout.write(s)
    else: open(a.o, "w").write(s)
```
